```python
import torch

def _softmax(x, axis=-1):
    return torch.softmax(x, dim=axis)
def _gelu(x):
    return torch.nn.functional.gelu(x, approximate="tanh")
def _silu(x):
    return torch.nn.functional.silu(x)
def _sigmoid(x):
    return torch.sigmoid(x)
def _layernorm(x, axis=-1, eps=1e-5):
    m = x.mean(dim=axis, keepdim=True)
    v = x.var(dim=axis, keepdim=True, unbiased=False)
    return (x - m) / torch.sqrt(v + eps)
def _scatter_add(tgt, idx, src, axis=0):
    return tgt.clone().index_add_(axis, idx, src)
def _segment_sum(src, seg, n):
    out = torch.zeros((n,) + src.shape[1:], dtype=src.dtype)
    return out.index_add_(0, seg, src)
def _pad(x, pw):
    flat = tuple(v for pair in reversed(pw) for v in pair)
    return torch.nn.functional.pad(x, flat)

kernel_name = 'concat_heads__sliding_local_dilated__compressed_kv_cla__prompt'

def setup_inputs():

    _w = (lambda a: (lambda t: t.to(torch.bfloat16) if t.is_floating_point() else t)(torch.as_tensor(a)))
    def _A_setup():
        B, S, D = 1, 2048, 448
        return {
            "x": _w((lambda *s: torch.randn(*s, dtype=torch.bfloat16) * 0.4)(B, S, D)),
            "wqkv": _w((lambda *s: torch.randn(*s, dtype=torch.bfloat16) * 0.4)(D, 3 * D)),
            "wo": _w((lambda *s: torch.randn(*s, dtype=torch.bfloat16) * 0.05)(D, D)),
        }
    _A_in = _A_setup()

    def _B_setup():
        B, H, Sq, Sk, D, M = 1, 16, 2048, 2048, 256, 448
        Dc = 4 * D
        return {
            "x": _w((lambda *s: torch.randn(*s, dtype=torch.bfloat16) * 0.2)(B, Sq, M)),
            "c_kv": _w((lambda *s: torch.randn(*s, dtype=torch.bfloat16) * 1.6)(B, Sk, Dc)),
            "w_q": _w((lambda *s: torch.randn(*s, dtype=torch.bfloat16) * 3.2)(M, H, D) * (M ** -0.5)),
            "w_uk": _w((lambda *s: torch.randn(*s, dtype=torch.bfloat16) * 3.2)(Dc, H, D) * (Dc ** -0.5)),
            "w_uv": _w((lambda *s: torch.randn(*s, dtype=torch.bfloat16) * 1.6)(Dc, H, D) * (Dc ** -0.5)),
            "w_o": _w((lambda *s: torch.randn(*s, dtype=torch.bfloat16) * 1.6)(H, D, M) * ((H * D) ** -0.5)),
        }
    _B_in = _B_setup()

    return {
        "A_x": _A_in["x"],
        "A_wqkv": _A_in["wqkv"],
        "A_wo": _A_in["wo"],
        "B_x": _B_in["x"],
        "B_c_kv": _B_in["c_kv"],
        "B_w_q": _B_in["w_q"],
        "B_w_uk": _B_in["w_uk"],
        "B_w_uv": _B_in["w_uv"],
        "B_w_o": _B_in["w_o"],
    }

def reference(A_x, A_wqkv, A_wo, B_x, B_c_kv, B_w_q, B_w_uk, B_w_uv, B_w_o):
    def _A_ref(x, wqkv, wo):
        B, S, D = x.shape
        H = 16; Dh = D // H
        W, dil = 8, 2
        qkv = (lambda x, *d: x.permute(*d))((x @ wqkv).reshape(B, S, 3, H, Dh), 2, 0, 3, 1, 4)
        q, k, v = qkv[0], qkv[1], qkv[2]
        scale = Dh ** -0.5
        pos = torch.arange(S)
        off = torch.arange(W) * dil
        idx = pos[:, None] - off[None, :]
        mask = idx >= 0
        idx_c = torch.where(mask, idx, 0).reshape(-1)
        kg = k[:, :, idx_c, :].reshape(B, H, S, W, Dh)
        vg = v[:, :, idx_c, :].reshape(B, H, S, W, Dh)
        logits = torch.einsum("bhsd,bhswd->bhsw", q, kg) * scale
        logits = torch.where(mask[None, None, :, :], logits, -1e9)
        attn = _softmax(logits, axis=-1)
        o = torch.einsum("bhsw,bhswd->bhsd", attn, vg)
        return (lambda x, *d: x.permute(*d))(o, 0, 2, 1, 3).reshape(B, S, D) @ wo

    def _B_ref(x, c_kv, w_q, w_uk, w_uv, w_o):
        B, Sq, M = x.shape[0], x.shape[1], x.shape[2]
        Sk = c_kv.shape[1]
        H, D = w_q.shape[1], w_q.shape[2]
        q = torch.einsum("bqm,mhd->bhqd", x, w_q)
        k = torch.einsum("bkc,chd->bhkd", c_kv, w_uk)
        v = torch.einsum("bkc,chd->bhkd", c_kv, w_uv)
        scores = torch.einsum("bhqd,bhkd->bhqk", q, k) * (D ** -0.5)
        off = Sk - Sq
        qi = torch.arange(Sq)[:, None]
        kj = torch.arange(Sk)[None, :]
        cmask = kj <= (qi + off)
        scores = torch.where(cmask[None, None], scores, -1e9)
        p = _softmax(scores, axis=-1)
        ctx = torch.einsum("bhqk,bhkd->bhqd", p, v)
        return torch.einsum("bhqd,hdm->bqm", ctx, w_o)

    a = _A_ref(A_x, A_wqkv, A_wo)
    b = _B_ref(B_x, B_c_kv, B_w_q, B_w_uk, B_w_uv, B_w_o)
    return torch.concatenate([a, b], axis=-1)
```

```python
import re, sys
MB = 1 << 20
KA = dict(A_x=0, A_wqkv=8, A_wo=16, B_x=24, B_c=32, B_wq=40, B_wuk=48, B_wuv=56, B_wo=64, out=72, dbg=80, ws=88)

def vr(b, n=1): return f"v{b}" if n == 1 else f"v[{b}:{b+n-1}]"
def ar(b, n=1): return f"a{b}" if n == 1 else f"a[{b}:{b+n-1}]"
def sr(b, n=1): return f"s{b}" if n == 1 else f"s[{b}:{b+n-1}]"

def regs_of(tok):
    m = re.match(r"([va])\[(\d+):(\d+)\]$", tok)
    if m: return {(m.group(1), i) for i in range(int(m.group(2)), int(m.group(3))+1)}
    m = re.match(r"([va])(\d+)$", tok)
    if m: return {(m.group(1), int(m.group(2)))}
    return set()

class Asm:
    def __init__(self):
        self.l = []
        self.nlab = 0
    def __call__(self, s):
        self.l.append(s)
    def lab(self, name): self.l.append(name + ":")
    def new(self, p="L"):
        self.nlab += 1
        return f"{p}_{self.nlab}"
    def ext(self, items):
        for s in items:
            if isinstance(s, (list, tuple)): self.ext(s)
            else: self.l.append(s)
    def pos(self): return len(self.l)
    def resolve_waits(self, start, end, wrap):
        idx = list(range(start, end))
        for p in idx:
            s = self.l[p]
            if not s.startswith("@WL"): continue
            parts = s.split("|")
            need = set()
            for t in parts[0].split()[1:]: need |= regs_of(t)
            extra = parts[1].strip() + " " if len(parts) > 1 else ""
            n = 0
            q = p - 1
            steps = 0
            found = False
            while steps < (end - start):
                if q < start:
                    if not wrap: break
                    q = end - 1
                t = self.l[q]
                if t.startswith("ds_"):
                    if t.startswith("ds_read") and regs_of(t.split()[1].rstrip(",")) & need:
                        found = True
                        break
                    n += 1
                q -= 1; steps += 1
            if not found: n = 15
            self.l[p] = f"s_waitcnt {extra}lgkmcnt({min(n,15)})"
    def text(self):
        out = []
        for s in self.l:
            assert not s.startswith("@"), s
            out.append(s if (s.endswith(":") or s.startswith(".")) else "  " + s)
        return "\n".join(out) + "\n"

def cost(s):
    if s.endswith(":"): return 0
    if s.startswith(("v_exp", "v_rcp", "v_log")): return 2
    if s.startswith("buffer_"): return DMACOST
    return 1
DMACOST = 2
def ismem(s): return s.startswith(("ds_", "buffer_", "global_"))
def isvalu(s): return s.startswith("v_")

class Sched:
    def __init__(self, mf, cap=2):
        self.mf = mf
        self.n = len(mf)
        self.cap = cap
        self.fixed = {}
        self.sp = None
        self.solo = set()
        self.streams = []
    def at(self, g, *ins):
        self.fixed.setdefault(g, []).extend(ins)
    def stream(self, items, start, end, deadline=None, solo=False):
        n = len(items)
        if n == 0: return
        dl = self.n - 1 if deadline is None else deadline
        self.streams.append([[start + (i*(end-start))/n, dl, it if isinstance(it, list) else [it]] for i, it in enumerate(items)])
        if solo: self.solo.add(id(self.streams[-1]))
    def stream_t(self, lst):
        self.streams.append([[t, d, it if isinstance(it, list) else [it]] for t, d, it in lst])
    def spill(self, lst):
        for x in lst:
            if not isinstance(x[2], list): x[2] = [x[2]]
        self.sp = lst
    def emit(self, A, name=""):
        over = 0
        for s in self.fixed.get(-1, []): A(s)
        for g in range(self.n):
            A(self.mf[g])
            used = 0
            fixed = list(self.fixed.get(g, []))
            used += sum(cost(s) for s in fixed)
            placed = []
            usedst = set()
            def ok(st):
                if any(ismem(x) for x in st[0][2]) and any(i == id(st) and isvalu(x) for i, x in placed): return False
                return True
            def put(st):
                nonlocal used
                it = st.pop(0)[2]
                usedst.add(id(st))
                if any(ismem(x) for x in it) and not any(i == id(st) for i, x in placed):
                    k = 0
                    while k < len(placed) and not isvalu(placed[k][1]): k += 1
                    placed[k:k] = [(id(st), x) for x in it]
                else:
                    placed.extend((id(st), x) for x in it)
                used += sum(cost(x) for x in it)
            while True:
                cands = [st for st in self.streams if st and st[0][0] <= g + 0.999 and not (id(st) in self.solo and id(st) in usedst)]
                forced = [st for st in cands if min(x[1] for x in st) <= g]
                pick = None
                if forced: pick = min(forced, key=lambda st: st[0][0])
                else:
                    fit = [st for st in cands if (used + sum(cost(x) for x in st[0][2]) <= self.cap or used == 0) and ok(st)]
                    if fit: pick = min(fit, key=lambda st: st[0][0])
                if pick is None: break
                put(pick)
            sp = self.sp
            while sp and sp[0][0] <= g and (((used + sum(cost(x) for x in sp[0][2]) <= self.cap or used == 0) and ok(sp)) or min(x[1] for x in sp) <= g):
                put(sp)
            if used > self.cap: over += used - self.cap
            for s in fixed: A(s)
            for _, s in placed: A(s)
        left = sum(len(st) for st in self.streams)
        assert left == 0, (name, left)
        if over: print(f"sched {name}: overflow slots {over}", file=sys.stderr)

def kernel_head(A, name):
    A(f".globl {name}"); A(".p2align 8"); A(f".type {name},@function"); A.lab(name)

def kernel_desc(name, vgpr, accum, sgpr=102):
    return f""".amdhsa_kernel {name}
  .amdhsa_next_free_vgpr {vgpr}
  .amdhsa_next_free_sgpr {sgpr}
  .amdhsa_accum_offset {accum}
  .amdhsa_group_segment_fixed_size 0
  .amdhsa_kernarg_size 96
  .amdhsa_user_sgpr_count 2
  .amdhsa_user_sgpr_kernarg_segment_ptr 1
  .amdhsa_system_sgpr_workgroup_id_x 1
.end_amdhsa_kernel
"""

def srd(A, d, lo, hi, nrec):
    A(f"s_mov_b32 s{d}, s{lo}")
    A(f"s_and_b32 s{d+1}, s{hi}, 0xffff")
    A(f"s_mov_b32 s{d+2}, {nrec}")
    A(f"s_mov_b32 s{d+3}, 0x20000")

def resolve_vm(A, start, end, wrap):
    for p in range(start, end):
        s = A.l[p]
        if not s.startswith("@WV"): continue
        tags = s.split()[1].split(",")
        n = 0; q = p - 1; steps = 0; found = False
        while steps < (end - start):
            if q < start:
                if not wrap: break
                q = end - 1
            t = A.l[q]
            if t.startswith(("buffer_", "global_")):
                if any(t.endswith(";#" + tg) for tg in tags):
                    found = True; break
                n += 1
            q -= 1; steps += 1
        assert found, s
        assert n <= 63, (s, n)
        A.l[p] = f"s_waitcnt vmcnt({n})" + (" lgkmcnt(0)" if s.endswith("+L") else "")
```

```python
import sys
from lib import *
WS_K, WS_V, WS_Q, WS_CTX, WS_PART, WS_OA, WS_FLAG = 0, 16*MB, 32*MB, 48*MB, 64*MB, 96*MB, 120*MB
OPT = dict(stamp=0, D=3, touch=1, aux=1)
for a in sys.argv[2:]:
    k, v = a.split("="); OPT[k] = int(v)
MF = "v_mfma_f32_16x16x32_bf16"
R = [0, 32768, 65536, 98304, 131072]

def stamp(A, slot):
    if OPT["stamp"]:
        A(f"s_memtime s[{80+2*slot}:{81+2*slot}]")
        if slot == 0: A("s_memrealtime s[76:77]")

def dump_stamps(A, n):
    L = A.new("ST")
    A("s_waitcnt vmcnt(0) lgkmcnt(0)")
    A(f"s_memtime s[{80+2*n}:{81+2*n}]")
    A("s_memrealtime s[78:79]")
    A("s_waitcnt lgkmcnt(0)")
    A(f"s_cmp_lg_u32 s2, {OPT.get('wg',0)}")
    A(f"s_cbranch_scc1 {L}")
    A(f"s_load_dwordx2 s[4:5], s[0:1], 80")
    A("s_waitcnt lgkmcnt(0)")
    srd(A, 8, 4, 5, 256)
    A("v_lshrrev_b32 v1, 6, v0")
    A("v_lshlrev_b32 v1, 6, v1")
    for i in range(1, n+1):
        A(f"s_sub_u32 s6, s{80+2*i}, s80")
        A("v_mov_b32 v2, s6")
        A(f"buffer_store_dword v2, v1, s[8:11], 0 offen offset:{4*i}")
    A(f"s_sub_u32 s6, s78, s76")
    A("v_mov_b32 v2, s6")
    A(f"buffer_store_dword v2, v1, s[8:11], 0 offen offset:{4*(n+1)}")
    A("v_mov_b32 v2, s76")
    A(f"buffer_store_dword v2, v1, s[8:11], 0 offen offset:{4*(n+2)}")
    A("v_mov_b32 v2, s78")
    A(f"buffer_store_dword v2, v1, s[8:11], 0 offen offset:{4*(n+3)}")
    A.lab(L)

S_C, S_W, S_X, S_WQ, S_AX, S_AW, S_WS = 4, 8, 12, 16, 20, 24, 28
S_SO16 = 32
S_SOX = 40
S_WV, S_HEAD, S_MT, S_NSEL, S_CNT = 45, 46, 47, 48, 49
S_M0A, S_W8K, S_W4K, S_W5K, S_W3K = 50, 51, 52, 53, 54
S_RDA, S_OOFF, S_QOFF, S_SCALE = 55, 56, 57, 58
S_T = 60
S_QB = 59
S_PTR = 68
V_L16, V_AL, V_AC, V_B, V_GC, V_GW, V_GX, V_TA, V_TB, V_DUM = 1, 2, 4, 6, 14, 16, 20, 22, 23, 24
V_T = 25
V_FA = 32
V_FB = 48
V_E = 176
V_GAX, V_GAW, V_RAW = 248, 214, 217

def fa(mi, ks): return V_FA + (mi & 1)*8 + ks*4
def fb(buf, ni, ks): return V_FB + buf*64 + (ni*2 + ks)*4

class St:
    bbase = R[3]

def rd_a(mi):
    return [f"ds_read_b128 {vr(fa(mi,ks),4)}, v{V_AC+ks} offset:{mi*2048}" for ks in range(2)]

def rd_b(buf, region):
    pre = []
    if not (0 <= region - St.bbase <= 32768):
        d = region - St.bbase
        pre = [f"v_add_u32 v{V_B+ni}, {d & 0xffffffff:#x}, v{V_B+ni}" for ni in range(8)]
        St.bbase = region
    o = region - St.bbase
    return pre + [f"ds_read_b64_tr_b16 {vr(fb(buf,ni,ks)+2*q,2)}, v{V_B+ni} offset:{o+ks*16384+q*2048}"
                  for ni in range(8) for ks in range(2) for q in range(2)]

def job(kind, lds, tag, nop=False):
    it = []
    def ld(v, sd, so, off): return f"buffer_load_dwordx4 v{v}, {sr(sd,4)}, {so} offen offset:{off} lds ;#{tag}"
    def adv(sd, n): return [f"s_add_u32 s{sd}, s{sd}, {n}", f"s_addc_u32 s{sd+1}, s{sd+1}, 0", f"s_sub_u32 s{sd+2}, s{sd+2}, {n}"]
    if kind in ("C", "W", "WQ"):
        sd = {"C": S_C, "W": S_W, "WQ": S_WQ}[kind]
        for jj in range(8):
            if jj % 4 == 0:
                if lds is None: it.append(f"s_add_u32 m0, s{S_M0A}, {(jj>>2)*4096}")
                else: it.append(f"s_add_u32 m0, s{S_W8K}, {lds + (jj>>2)*4096}")
            v = V_GC + (jj & 1) if kind == "C" else V_GW + (jj & 1) + 2*(jj >> 2)
            it.append(ld(v, sd, f"s{S_SO16+jj}", (jj & 3)*1024))
        it += adv(sd, 128 if kind == "C" else 64*8192)
        if lds is None:
            it += [f"s_add_u32 s{S_M0A}, s{S_M0A}, 32768", f"s_cmp_ge_u32 s{S_M0A}, {R[3]}",
                   [f"s_cselect_b32 s{S_M0A}, s{S_W8K}, s{S_M0A}"]]
            c = it.pop(); b = it.pop(); it.append([b] + c)
    elif kind == "X":
        it.append(f"s_add_u32 m0, s{S_W4K}, {lds}")
        for jj in range(4):
            it.append(ld(V_GX + (jj & 1), S_X, f"s{S_SOX+jj}", jj*1024))
        it += adv(S_X, 128)
    elif kind == "S":
        for jj in range(5):
            it.append(f"s_add_u32 m0, s{S_W5K}, {lds + jj*1024}")
            it.append(ld(V_GAX + jj, S_AX, "0", 0))
        it += adv(S_AX, 128)
        it.append(f"s_add_u32 m0, s{S_W3K}, {lds + 20480}")
        for jj in range(3):
            it.append(ld(V_GAW + jj, S_AW, "0", jj*1024))
        it += adv(S_AW, 64*2688)
    out = []
    i = 0
    while i < len(it):
        x = it[i]
        if isinstance(x, str) and x.startswith("s_add_u32 s") and i+1 < len(it) and isinstance(it[i+1], str) and it[i+1].startswith("s_addc"):
            out.append([x, it[i+1]]); i += 2
        elif isinstance(x, str) and x.startswith("s_add_u32 m0"):
            out.append([x, "s_nop 0"] if nop else x); i += 1
        else:
            out.append(x); i += 1
    return out

def touches():
    if not OPT["touch"]: return []
    return [f"buffer_load_dword v{V_DUM}, v{V_TA}, {sr(S_C,4)}, 0 offen ;#touch",
            f"buffer_load_dword v{V_DUM}, v{V_TB}, {sr(S_W,4)}, 0 offen ;#touch"]

def set_rda(region, mi_rows):
    if region is None:
        return [[f"s_add_u32 s{S_RDA}, s{S_RDA}, 32768"], [f"s_cmp_ge_u32 s{S_RDA}, {R[3]}", f"s_cselect_b32 s{S_RDA}, s{S_T+7}, s{S_RDA}"],
                f"v_add_u32 v{V_AC}, s{S_RDA}, v{V_AL}", f"v_add_u32 v{V_AC+1}, s{S_RDA}, v{V_AL+1}"]
    src = S_T+7 if mi_rows == 8 else S_T+6
    return [f"s_add_u32 s{S_RDA}, s{src}, {region}",
            f"v_add_u32 v{V_AC}, s{S_RDA}, v{V_AL}", f"v_add_u32 v{V_AC+1}, s{S_RDA}, v{V_AL+1}"]

ESET = [0]
def epi_frag(accs, off, soff_reg, scale):
    t = V_E + (ESET[0] % 3)*12
    ESET[0] += 1
    o = []
    for j, a in enumerate(accs):
        for r in range(4):
            o.append(f"v_accvgpr_read_b32 v{t+j*4+r}, a{a+r}")
    if scale:
        for r in range(8): o.append(f"v_mul_f32 v{t+r}, s{S_SCALE}, v{t+r}")
    for r in range(4):
        o.append(f"v_cvt_pk_bf16_f32 v{t+8+r}, v{t+2*r}, v{t+2*r+1}")
    o.insert(len(o)-2, f"s_add_u32 s{S_T}, s{soff_reg}, {off}")
    o.append(f"buffer_store_dwordx4 {vr(t+8,4)}, v{V_L16}, {sr(S_WS,4)}, s{S_T} offen ;#st")
    return o

def acc(mi, ni): return (mi*8 + ni)*4

def epi_rows(vtype, rows, soff, scale):
    res = []
    if not vtype:
        for mi in rows:
            for p in range(4):
                res.append((mi, epi_frag([acc(mi, 2*p), acc(mi, 2*p+1)], mi*8192 + p*1024, soff, scale)))
    else:
        for mi in rows:
            if mi & 1:
                p = mi >> 1
                for ni in range(8):
                    res.append((mi, epi_frag([acc(mi-1, ni), acc(mi, ni)], (p >> 1)*32768 + ni*2048 + (p & 1)*1024, soff, scale)))
    return res

def gemm_step(A, name, MI, vtype, buf, nextB, nextA, nextMI, jobs, waits, extra=None, first=False, BG=None, tail=None, tch=False, pre=None):
    mf = []
    for mi in range(MI):
        for ni in range(8):
            for ks in range(2):
                x, w = vr(fa(mi, ks), 4), vr(fb(buf, ni, ks), 4)
                a, b = (x, w) if vtype else (w, x)
                c = ar(acc(mi, ni), 4)
                mf.append(f"{MF} {c}, {a}, {b}, {'0' if (first and ks == 0) else c}")
    n = len(mf)
    S = Sched(mf)
    if BG is None: BG = 3
    if OPT.get("nobar") and name in ("kv0", "kv1"): waits = None
    if OPT.get("onlybar") and name in ("kv0", "kv1"): S.at(BG, "s_barrier"); waits = None
    if OPT.get("onlywait") and name in ("kv0", "kv1"): S.at(BG, f"@WV {waits}"); waits = None
    S.at(BG, f"@WV {waits}", "s_barrier") if waits else None
    for mi in range(1, MI):
        S.stream(rd_a(mi), 16*(mi-1) + 1, 16*(mi-1) + 5, deadline=16*(mi-1) + 8)
        S.at(16*mi - 1, f"@WL {vr(fa(mi,0),8)}")
    if nextA is not None:
        sa = set_rda(None if nextA == "dyn" else nextA, nextMI)
        S.stream_t([(n - 22 + i, n - 8, x) for i, x in enumerate(sa)] + [(n - 15 + 2*i, n - 8, x) for i, x in enumerate(rd_a(0))])
    need = []
    if nextA is not None: need.append(vr(fa(0,0),8))
    if nextB is not None:
        S.stream(rd_b(buf ^ 1, nextB), BG + 1, n - 8, deadline=n - 5)
        need.append(vr(fb(buf ^ 1,0,0),64))
    if need: S.at(n - 1, "@WL " + " ".join(need))
    items = []
    for j in jobs: items += job(*j)
    if tch: items += touches()
    if OPT.get("nodma") and name in ("kv0", "kv1"):
        items = [x for i, x in enumerate(items) if not (isinstance(x, str) and x.endswith(("c0","c1","w0","w1")) and "offset:0 " not in x)]
    S.stream(items, BG + 1, BG + 1 + min(n - BG - 4, OPT.get("dmaspan", 72)), deadline=n - 2, solo=True)
    if pre:
        S.stream(pre, n - 40, n - 8, deadline=n - 3)
        S.at(n - 1, "s_waitcnt lgkmcnt(0)")
    if extra: S.spill(extra)
    if tail: S.at(n - 1, *tail)
    S.emit(A, name)

def p1_setup(A):
    A(f"s_load_dwordx16 {sr(S_PTR-8,16)}, s[0:1], 0")
    A(f"s_load_dwordx2 {sr(S_WS,2)}, s[0:1], {KA['ws']}")
    t = V_T
    A(f"v_lshrrev_b32 v{t}, 6, v0")
    A(f"v_and_b32 v{t+1}, 63, v0")
    A(f"v_readfirstlane_b32 s{S_WV}, v{t}")
    A(f"v_lshlrev_b32 v{V_L16}, 4, v{t+1}")
    A(f"s_bfe_u32 s{S_MT}, s2, 0x30003")
    A(f"s_bfe_u32 s{S_NSEL}, s2, 0x20006")
    A(f"s_and_b32 s{S_HEAD}, s2, 7")
    A(f"s_lshl_b32 s{S_HEAD}, s{S_HEAD}, 1")
    A(f"s_and_b32 s{S_CNT}, s{S_NSEL}, 1")
    A(f"s_add_u32 s{S_HEAD}, s{S_HEAD}, s{S_CNT}")
    A(f"s_lshr_b32 s{S_CNT}, s{S_NSEL}, 1")
    A(f"s_lshl_b32 s{S_QB}, s{S_MT}, 1")
    A(f"s_add_u32 s{S_QB}, s{S_QB}, s{S_CNT}")
    A(f"s_lshl_b32 s{S_W8K}, s{S_WV}, 13")
    A(f"s_lshl_b32 s{S_W4K}, s{S_WV}, 12")
    A(f"s_mul_i32 s{S_W5K}, s{S_WV}, 5120")
    A(f"s_mul_i32 s{S_W3K}, s{S_WV}, 3072")
    A(f"s_mov_b32 s{S_M0A}, s{S_W8K}")
    for jj in range(8): A(f"s_mov_b32 s{S_SO16+jj}, {jj*16384 - (jj&3)*1024}")
    for jj in range(5): A(f"s_mov_b32 s{S_SOX+jj}, {jj*7168 - (jj&3)*1024}")
    A(f"v_bfe_u32 v{t+2}, v0, 3, 3")
    A(f"v_bfe_u32 v{t+3}, v0, 4, 2")
    A(f"v_and_b32 v{t+4}, 7, v0")
    A(f"v_xor_b32 v{t+4}, v{t+4}, v{t+3}")
    A(f"v_lshlrev_b32 v{t+4}, 4, v{t+4}")
    A(f"v_lshl_add_u32 v{t+5}, v{t}, 6, v{t+2}")
    A(f"v_lshl_add_u32 v{V_GC}, v{t+5}, 11, v{t+4}")
    A(f"v_xor_b32 v{V_GC+1}, 64, v{V_GC}")
    A(f"v_lshl_add_u32 v{t+5}, v{t}, 5, v{t+2}")
    A(f"v_mul_u32_u24 v{t+5}, 896, v{t+5}")
    A(f"v_add_u32 v{V_GX}, v{t+5}, v{t+4}")
    A(f"v_xor_b32 v{t+6}, 64, v{t+4}")
    A(f"v_add_u32 v{V_GX+1}, v{t+5}, v{t+6}")
    A(f"v_bfe_u32 v{t+2}, v0, 5, 1")
    A(f"v_lshl_add_u32 v{t+3}, v{t}, 4, v{t+2}")
    A(f"v_lshlrev_b32 v{t+3}, 13, v{t+3}")
    A(f"v_and_b32 v{t+4}, 31, v0")
    A(f"v_lshlrev_b32 v{t+2}, 1, v{t+2}")
    A(f"v_xor_b32 v{t+4}, v{t+4}, v{t+2}")
    A(f"v_lshl_add_u32 v{V_GW}, v{t+4}, 4, v{t+3}")
    A(f"v_xor_b32 v{V_GW+1}, {4*16}, v{V_GW}")
    A(f"v_xor_b32 v{V_GW+2}, {8*16:#x}, v{V_GW}")
    A(f"v_xor_b32 v{V_GW+3}, {12*16:#x}, v{V_GW}")
    A(f"v_and_b32 v{t+2}, 15, v0")
    A(f"v_bfe_u32 v{t+3}, v0, 1, 3")
    A(f"v_bfe_u32 v{t+4}, v0, 4, 2")
    A(f"v_xor_b32 v{t+3}, v{t+3}, v{t+4}")
    A(f"v_lshlrev_b32 v{t+3}, 4, v{t+3}")
    A(f"v_lshl_add_u32 v{V_AL}, v{t+2}, 7, v{t+3}")
    A(f"v_xor_b32 v{V_AL+1}, 64, v{V_AL}")
    A(f"v_bfe_u32 v{t+2}, v0, 2, 2")
    A(f"v_lshl_add_u32 v{t+3}, v{t+4}, 3, v{t+2}")
    A(f"v_lshlrev_b32 v{t+3}, 9, v{t+3}")
    A(f"v_add_u32 v{t+3}, {R[3]:#x}, v{t+3}")
    A(f"v_bfe_u32 v{t+5}, v0, 6, 1")
    A(f"v_lshl_add_u32 v{t+3}, v{t+5}, 8, v{t+3}")
    A(f"v_and_b32 v{t+5}, 3, v0")
    A(f"v_lshl_add_u32 v{t+3}, v{t+5}, 3, v{t+3}")
    A(f"v_bfe_u32 v{t+2}, v0, 2, 3")
    for ni in range(8):
        A(f"v_xor_b32 v{t+5}, {ni}, v{t+2}")
        A(f"v_lshl_add_u32 v{V_B+ni}, v{t+5}, 5, v{t+3}")
    D = OPT["D"]
    A(f"s_lshl_b32 s{S_CNT}, s{S_NSEL}, 6")
    A(f"v_and_b32 v{t+2}, 15, v0")
    A(f"v_lshl_add_u32 v{t+2}, v{t}, 4, v{t+2}")
    A(f"v_add_u32 v{t+2}, s{S_CNT}, v{t+2}")
    A(f"v_bfe_u32 v{t+3}, v0, 4, 1")
    A(f"v_add_u32 v{t+3}, {D}, v{t+3}")
    A(f"v_lshlrev_b32 v{t+3}, 7, v{t+3}")
    A(f"v_lshl_add_u32 v{V_TA}, v{t+2}, 11, v{t+3}")
    A(f"s_lshl_b32 s{S_CNT}, s{S_MT}, 4")
    A(f"s_add_u32 s{S_CNT}, s{S_CNT}, {64*D}")
    A(f"v_bfe_u32 v{t+2}, v0, 2, 2")
    A(f"v_lshl_add_u32 v{t+2}, v{t}, 2, v{t+2}")
    A(f"v_add_u32 v{t+2}, s{S_CNT}, v{t+2}")
    A(f"v_and_b32 v{t+3}, 3, v0")
    A(f"v_lshlrev_b32 v{t+3}, 7, v{t+3}")
    A(f"v_lshl_add_u32 v{V_TB}, v{t+2}, 13, v{t+3}")
    A("s_waitcnt lgkmcnt(0)")
    P = lambda n: S_PTR - 8 + KA[n]//4
    def mk(d, name, offreg, nrec_total):
        A(f"s_add_u32 s{d}, s{P(name)}, s{offreg}")
        A(f"s_addc_u32 s{d+1}, s{P(name)+1}, 0")
        A(f"s_and_b32 s{d+1}, s{d+1}, 0xffff")
        A(f"s_sub_u32 s{d+2}, {nrec_total}, s{offreg}")
        A(f"s_mov_b32 s{d+3}, 0x20000")
    A(f"s_lshl_b32 s{S_CNT}, s{S_MT}, 19")
    mk(S_C, "B_c", S_CNT, 2048*2048)
    A(f"s_cmp_lt_u32 s{S_NSEL}, 2")
    A(f"s_cselect_b32 s{P('B_wuk')}, s{P('B_wuk')}, s{P('B_wuv')}")
    A(f"s_cselect_b32 s{P('B_wuk')+1}, s{P('B_wuk')+1}, s{P('B_wuv')+1}")
    A(f"s_lshl_b32 s{S_CNT}, s{S_HEAD}, 9")
    mk(S_W, "B_wuk", S_CNT, 1024*8192)
    return mk

def p1_setup2(A, mk):
    A(f"s_lshl_b32 s{S_CNT}, s{S_HEAD}, 9")
    mk(S_WQ, "B_wq", S_CNT, 448*8192)
    A(f"s_mul_i32 s{S_CNT}, s{S_QB}, {128*896}")
    mk(S_X, "B_x", S_CNT, 2048*896)
    A(f"s_and_b32 s{S_WS+1}, s{S_WS+1}, 0xffff")
    A(f"s_mov_b32 s{S_WS+2}, {128*MB}")
    A(f"s_mov_b32 s{S_WS+3}, 0x20000")
    A(f"s_lshr_b32 s{S_T+6}, s{S_WV}, 1")
    A(f"s_lshl_b32 s{S_T+7}, s{S_T+6}, 14")
    A(f"s_lshl_b32 s{S_T+6}, s{S_T+6}, 13")
    A(f"s_mov_b32 s{S_RDA}, s{S_T+7}")
    A(f"v_add_u32 v{V_AC}, s{S_RDA}, v{V_AL}")
    A(f"v_add_u32 v{V_AC+1}, s{S_RDA}, v{V_AL+1}")
    A(f"s_lshl_b32 s{S_OOFF}, s{S_HEAD}, 20")
    A(f"s_add_u32 s{S_QOFF}, s{S_OOFF}, {WS_Q}")
    A(f"s_lshl_b32 s{S_T}, s{S_MT}, 17")
    A(f"s_add_u32 s{S_OOFF}, s{S_OOFF}, s{S_T}")
    A(f"s_lshl_b32 s{S_T}, s{S_T+7}, 2")
    A(f"s_add_u32 s{S_OOFF}, s{S_OOFF}, s{S_T}")
    A(f"s_and_b32 s{S_T+1}, s{S_WV}, 1")
    A(f"s_lshl_b32 s{S_T+2}, s{S_T+1}, 12")
    A(f"s_lshl_b32 s{S_T+3}, s{S_T+1}, 14")
    A(f"s_add_u32 s{S_T+3}, s{S_T+3}, {WS_V}")
    A(f"s_cmp_lt_u32 s{S_NSEL}, 2")
    A(f"s_cselect_b32 s{S_T}, s{S_T+2}, s{S_T+3}")
    A(f"s_add_u32 s{S_OOFF}, s{S_OOFF}, s{S_T}")
    A(f"s_lshl_b32 s{S_T}, s{S_QB}, 16")
    A(f"s_add_u32 s{S_QOFF}, s{S_QOFF}, s{S_T}")
    A(f"s_lshl_b32 s{S_T}, s{S_T+7}, 1")
    A(f"s_add_u32 s{S_QOFF}, s{S_QOFF}, s{S_T}")
    A(f"s_add_u32 s{S_QOFF}, s{S_QOFF}, s{S_T+2}")
    A(f"s_mov_b32 s{S_SCALE}, 0x3db8aa3b")


SWB = [112, 48]
SXB = [[220, 224, 228, 232, 236, 240], [96, 100, 104, 108, 160, 164]]
V_RAX = 244
V_RWC = 246
SACC = 128
def sw(buf, t, nb, ks): return SWB[buf] + ((t*2 + nb)*2 + ks)*4
def sx(buf, rb, ks): return SXB[buf][rb*2 + ks]
STILES = [(t, nb, rb) for rb in range(3) for t in (1, 2, 0) for nb in range(2) if not (t == 0 and rb == 0)]
def sacc(t, nb, rb): return SACC + STILES.index((t, nb, rb))*4

def s_reads(buf, region):
    o = [f"s_add_u32 s{S_RDA}, s{S_W4K}, {region}",
         f"v_add_u32 v{V_RAX}, s{S_RDA}, v{V_AL}", f"v_add_u32 v{V_RAX+1}, s{S_RDA}, v{V_AL+1}",
         f"v_add_u32 v{V_RWC}, {region + 20480:#x}, v{V_RAW}", f"v_add_u32 v{V_RWC+1}, {region + 20480:#x}, v{V_RAW+1}"]
    for rb in range(3):
        for ks in range(2):
            o.append(f"ds_read_b128 {vr(sx(buf,rb,ks),4)}, v{V_RAX+ks} offset:{rb*2048}")
    for t in range(3):
        for nb in range(2):
            for ks in range(2):
                for q in range(2):
                    o.append(f"ds_read_b64_tr_b16 {vr(sw(buf,t,nb,ks)+2*q,2)}, v{V_RWC+nb} offset:{t*64 + q*768 + ks*6144}")
    return o

def s_step(A, u, nextreg, jobs, waits, extra):
    buf = u & 1
    mf = []
    for (t, nb, rb) in STILES:
        for ks in range(2):
            x, w = vr(sx(buf, rb, ks), 4), vr(sw(buf, t, nb, ks), 4)
            a, b = (x, w) if t == 2 else (w, x)
            c = ar(sacc(t, nb, rb), 4)
            mf.append(f"{MF} {c}, {a}, {b}, {'0' if (u == 0 and ks == 0) else c}")
    S = Sched(mf)
    if waits: S.at(0, f"@WV {waits}", "s_barrier")
    if nextreg is not None:
        S.stream(s_reads(buf ^ 1, nextreg), 1, 22, deadline=27)
        S.at(31, "s_waitcnt lgkmcnt(0)")
    items = []
    for j in jobs: items += job(*j)
    S.stream_t([(1 + i*1.5, 31 - len(items) + i + 1, x) for i, x in enumerate(items)])
    S.solo.add(id(S.streams[-1]))
    if extra: S.spill(extra)
    S.emit(A, f"s{u}")

def s_setup(A, mk):
    t = V_T
    A(f"s_mov_b32 s{S_CNT}, 0")
    mk(S_AX, "A_x", S_CNT, 2048*896)
    A(f"s_mul_i32 s{S_CNT}, s{S_HEAD}, 56")
    A(f"s_and_b32 s{S_CNT}, s{S_CNT}, -16")
    mk(S_AW, "A_wqkv", S_CNT, 448*2688)
    A(f"v_lshrrev_b32 v{t}, 6, v0")
    A(f"v_bfe_u32 v{t+1}, v0, 3, 3")
    A(f"v_mad_u32_u24 v{t+1}, v{t}, 40, v{t+1}")
    A(f"s_lshl_b32 s{S_CNT}, s{S_QB}, 7")
    A(f"s_sub_u32 s{S_CNT}, s{S_CNT}, 16")
    A(f"v_bfe_u32 v{t+2}, v0, 4, 3")
    A(f"v_and_b32 v{t+3}, 7, v0")
    A(f"v_xor_b32 v{t+3}, v{t+3}, v{t+2}")
    A(f"v_lshlrev_b32 v{t+3}, 4, v{t+3}")
    A(f"v_bfrev_b32 v{t+5}, 1")
    for jj in range(5):
        A(f"v_add_u32 v{t+2}, {8*jj}, v{t+1}")
        A(f"v_cmp_gt_u32 vcc, 144, v{t+2}")
        A(f"v_add_u32 v{t+2}, s{S_CNT}, v{t+2}")
        A(f"v_mul_i32_i24 v{t+2}, 896, v{t+2}")
        A(f"v_add_u32 v{t+2}, v{t+2}, v{t+3}")
        A(f"v_cndmask_b32 v{V_GAX+jj}, v{t+5}, v{t+2}, vcc")
        A(f"v_xor_b32 v{t+3}, 64, v{t+3}")
    A(f"v_and_b32 v{t+1}, 63, v0")
    A(f"v_mul_u32_u24 v{t+2}, 192, v{t}")
    A(f"v_add_u32 v{t+1}, v{t+1}, v{t+2}")
    for jj in range(3):
        A(f"v_add_u32 v{t+2}, {64*jj}, v{t+1}")
        A(f"v_mul_u32_u24 v{t+3}, 43691, v{t+2}")
        A(f"v_lshrrev_b32 v{t+3}, 19, v{t+3}")
        A(f"v_mul_u32_u24 v{t+4}, 12, v{t+3}")
        A(f"v_sub_u32 v{t+4}, v{t+2}, v{t+4}")
        A(f"v_lshrrev_b32 v{t+4}, 2, v{t+4}")
        A(f"v_mul_u32_u24 v{t+3}, 2688, v{t+3}")
        A(f"v_mul_u32_u24 v{t+4}, 896, v{t+4}")
        A(f"v_and_b32 v{t+2}, 3, v{t+2}")
        A(f"v_lshl_add_u32 v{t+3}, v{t+2}, 4, v{t+3}")
        A(f"v_add_u32 v{t+3}, v{t+3}, v{t+4}")
        A(f"v_subrev_u32 v{V_GAW+jj}, {1024*jj}, v{t+3}")
    A(f"v_bfe_u32 v{t+1}, v0, 4, 2")
    A(f"v_bfe_u32 v{t+2}, v0, 2, 2")
    A(f"v_lshl_add_u32 v{t+1}, v{t+1}, 3, v{t+2}")
    A(f"v_mul_u32_u24 v{t+1}, 192, v{t+1}")
    A(f"s_and_b32 s{S_CNT}, s{S_HEAD}, 1")
    A(f"s_lshl_b32 s{S_CNT}, s{S_CNT}, 3")
    A(f"v_add_u32 v{t+1}, s{S_CNT}, v{t+1}")
    A(f"v_and_b32 v{t+2}, 3, v0")
    A(f"v_lshlrev_b32 v{t+2}, 3, v{t+2}")
    A(f"v_add_u32 v{V_RAW}, v{t+1}, v{t+2}")
    A(f"v_add_u32 v{t+2}, 32, v{t+2}")
    A(f"v_min_u32 v{t+2}, 48, v{t+2}")
    A(f"v_add_u32 v{V_RAW+1}, v{t+1}, v{t+2}")

def cross(A, reg, op, t):
    for sw_ in ("v_permlane16_swap_b32", "v_permlane32_swap_b32"):
        A(f"v_mov_b32 v{t}, v{reg}")
        A("s_nop 1")
        A(f"{sw_} v{t}, v{reg}")
        A("s_nop 1")
        A(f"{op} v{reg}, v{reg}, v{t}")

def s_attn(A):
    KF, QF, VP, T, SS, OO = 32, 44, 52, 64, 80, 96
    M = 4
    def pack(dst, a):
        for r in range(4): A(f"v_accvgpr_read_b32 v{T+r}, a{a+r}")
        A(f"v_cvt_pk_bf16_f32 v{dst}, v{T}, v{T+1}")
        A(f"v_cvt_pk_bf16_f32 v{dst+1}, v{T+2}, v{T+3}")
    A(f"v_and_b32 v{T+8}, 15, v0")
    A(f"v_bfe_u32 v{T+9}, v0, 4, 2")
    A(f"v_cmp_ne_u32 s[20:21], 3, v{T+9}")
    A(f"v_lshlrev_b32 v{T+9}, 2, v{T+9}")
    A(f"v_sub_u32 v{T+8}, v{T+8}, v{T+9}")
    for j in range(8):
        A(f"v_add_u32 v{T+9}, {(16 if j < 4 else 0) - (j & 3)}, v{T+8}")
        A(f"v_and_b32 v{T+9}, -15, v{T+9}")
        A(f"v_cmp_eq_u32 {sr(M+2*j,2)}, 0, v{T+9}")
    A(f"s_or_b32 s24, s{S_QB}, s{S_WV}")
    A(f"s_cmp_eq_u32 s24, 0")
    A(f"s_cselect_b64 s[22:23], 0, -1")
    A(f"v_mov_b32 v{T+10}, 0xff800000")
    A(f"s_mov_b32 s26, 0x3e4182fc" if False else f"s_mov_b32 s26, {SCALE28:#x}")
    A(f"s_mov_b32 s27, 0x3fb8aa3b")
    for rb in range(3):
        for nb in range(2): pack(KF + rb*4 + nb*2, sacc(1, nb, rb))
    for rb in (1, 2):
        for nb in range(2): pack(QF + (rb-1)*4 + nb*2, sacc(0, nb, rb))
        for r in (2, 3): A(f"v_cndmask_b32 v{QF+(rb-1)*4+r}, 0, v{QF+(rb-1)*4+r}, s[20:21]")
    A("s_nop 1")
    for rb in (1, 2):
        for j in range(2):
            A(f"{MF} {vr(SS+(rb-1)*8+j*4,4)}, {vr(KF+(rb-1+j)*4,4)}, {vr(QF+(rb-1)*4,4)}, 0")
    for nb in range(2):
        for rb in range(3): pack(VP + nb*6 + rb*2, sacc(2, nb, rb))
    for rb in (1, 2):
        b = SS + (rb-1)*8
        for rnd in range(2):
            for i in range(4): A(f"v_cvt_pk_bf16_f32 v{T+i}, v{b+2*i}, v{b+2*i+1}")
            for i in range(4):
                A(f"v_lshlrev_b32 v{b+2*i}, 16, v{T+i}")
                A(f"v_and_b32 v{b+2*i+1}, 0xffff0000, v{T+i}")
            if rnd == 0:
                for j in range(8): A(f"v_mul_f32 v{b+j}, s26, v{b+j}")
        for j in range(8):
            m = sr(M+2*j, 2)
            if rb == 1 and j < 4:
                A(f"s_and_b64 s[24:25], {m}, s[22:23]")
                m = "s[24:25]"
            A(f"v_cndmask_b32 v{b+j}, v{T+10}, v{b+j}, {m}")
        A(f"v_max3_f32 v{T+4}, v{b}, v{b+1}, v{b+2}")
        A(f"v_max3_f32 v{T+5}, v{b+3}, v{b+4}, v{b+5}")
        A(f"v_max3_f32 v{T+4}, v{T+4}, v{b+6}, v{b+7}")
        A(f"v_max_f32 v{T+4}, v{T+4}, v{T+5}")
        cross(A, T+4, "v_max_f32", T+5)
        for j in range(8): A(f"v_sub_f32 v{b+j}, v{b+j}, v{T+4}")
        for j in range(8): A(f"v_mul_f32 v{b+j}, s27, v{b+j}")
        for j in range(8): A(f"v_exp_f32 v{b+j}, v{b+j}")
        A(f"v_add_f32 v{T+4}, v{b}, v{b+1}")
        for j in range(2, 8): A(f"v_add_f32 v{T+4}, v{T+4}, v{b+j}")
        cross(A, T+4, "v_add_f32", T+5)
        A(f"v_rcp_f32 v{T+4}, v{T+4}")
        A("s_nop 0")
        for j in range(8): A(f"v_mul_f32 v{b+j}, v{b+j}, v{T+4}")
        for i in range(4): A(f"v_cvt_pk_bf16_f32 v{b+i}, v{b+2*i}, v{b+2*i+1}")
        A("s_nop 1")
        for nb in range(2):
            A(f"{MF} {vr(OO+(rb-1)*8+nb*4,4)}, {vr(VP+nb*6+(rb-1)*2,4)}, {vr(b,4)}, 0")
    A(f"s_lshl_b32 s24, s{S_QB}, 3")
    A(f"s_lshl_b32 s25, s{S_WV}, 1")
    A(f"s_add_u32 s24, s24, s25")
    A(f"s_lshl_b32 s24, s24, 4")
    A(f"s_add_u32 s24, s24, s{S_HEAD}")
    A(f"s_lshl_b32 s24, s24, 10")
    A(f"s_add_u32 s24, s24, {WS_OA}")
    A(f"s_add_u32 s25, s24, 16384")
    A("s_nop 3")
    for rb in (1, 2):
        b = OO + (rb-1)*8
        for i in range(4): A(f"v_cvt_pk_bf16_f32 v{b+i}, v{b+2*i}, v{b+2*i+1}")
        for r in (2, 3): A(f"v_cndmask_b32 v{b+r}, 0, v{b+r}, s[20:21]")
        A(f"buffer_store_dwordx4 {vr(b,4)}, v{V_L16}, {sr(S_WS,4)}, s{24+rb-1} offen")

import struct
SCALE28 = struct.unpack("<I", struct.pack("<f", 28 ** -0.5))[0]

def timed(items_ready, gap_of_row, n, start=0):
    out = []
    for row, items in items_ready:
        for it in items:
            out.append((max(start, gap_of_row(row)), 10**6, it))
    return out

def p1_main(A, vtype):
    St.bbase = R[3]
    tag = "V" if vtype else "K"
    p0 = A.pos()
    A(f"s_mov_b32 s{S_CNT}, 7")
    L = A.new("KVL")
    A(".p2align 6")
    A.lab(L)
    l0 = A.pos()
    gemm_step(A, "kv0", 8, vtype, 0, R[4], "dyn", 8, [("C", None, "c0"), ("W", R[3], "w0")], "w1", tch=True)
    gemm_step(A, "kv1", 8, vtype, 1, R[3], "dyn", 8, [("C", None, "c1"), ("W", R[4], "w1")], "w0",
              tail=None)
    A(f"s_sub_u32 s{S_CNT}, s{S_CNT}, 1")
    A(f"s_cmp_lg_u32 s{S_CNT}, 0")
    A(f"s_cbranch_scc1 {L}")
    l1 = A.pos()
    A.resolve_waits(l0, l1, True); resolve_vm(A, l0, l1, True)
    stamp(A, 3)
    gemm_step(A, "kv14", 8, vtype, 0, R[4], R[0], 8, [("WQ", R[3], "bq0"), ("X", R[1], "aq0"), ("X", R[1]+16384, "aq1")], "w1")
    ep = epi_rows(vtype, range(8), S_OOFF, False)
    flat = []
    for row, items in ep:
        for it in items: flat.append([16*(row+1) + 3, 127 if row < 2 else (128 + 16*(row - (row & 1 if vtype else 0)) - 1 if row < 4 else 10**6), it])
    gemm_step(A, "kv15", 8, vtype, 1, R[3], R[1], 4, [("WQ", R[4], "bq1"), ("X", R[2], "aq2"), ("X", R[2]+16384, "aq3")], "aq0", extra=flat)
    for x in flat: x[0] -= 128; x[1] -= 128
    stamp(A, 4)
    AQ = [R[1], R[1]+16384, R[2], R[2]+16384, R[1], R[1]+16384, R[2]]
    BQ = [R[3], R[4], R[0], R[3], R[4], R[0], R[3]]
    jobsQ = [[("WQ", R[0], "bq2"), ("WQ", R[3], "bq3")],
             [("WQ", R[4], "bq4"), ("X", R[1], "aq4")],
             [("WQ", R[0], "bq5"), ("X", R[1]+16384, "aq5")],
             [("WQ", R[3], "bq6"), ("X", R[2], "aq6")],
             [("S", R[4], "s0")], [("S", R[0], "s1")], [("S", R[3], "s2"), ("S", R[1], "s3")]]
    epq = epi_rows(False, range(4), S_QOFF, True)
    for u in range(7):
        waits = f"bq{u+1},aq{u+1}" if u < 6 else "s0"
        if u == 6:
            for row, items in epq:
                for it in items: flat.append([16*(row+1) + 3, 10**6, it])
        gemm_step(A, f"q{u}", 4, False, u & 1, BQ[u+1] if u < 6 else None, AQ[u+1] if u < 6 else None, 4, jobsQ[u], waits, extra=flat, first=(u == 0),
                  pre=s_reads(0, R[4]) if u == 6 else None)
        for x in flat: x[0] -= 64; x[1] -= 64
    stamp(A, 5)
    SR = [R[4], R[0], R[3], R[1], R[2], R[4], R[0]]
    jobsS = [[("S", R[2], "s4")], [("S", R[4], "s5")], [("S", R[0], "s6")], [], [], [], []]
    for x in flat: x[0] = max(x[0], 3)
    for u in range(7):
        s_step(A, u, SR[u+1] if u < 6 else None, jobsS[u], f"s{u+1}" if u < 6 else None, flat)
        for x in flat: x[0] = 0
    stamp(A, 6)
    for x in flat: A.ext(x[2])
    l2 = A.pos()
    A.resolve_waits(l0, l2, False); resolve_vm(A, l0, l2, False)

def gen_k1(A):
    name = "proj_kernel"
    kernel_head(A, name)
    A("s_cmp_ge_u32 s2, 256")
    A("s_cbranch_scc1 K1_END")
    stamp(A, 0)
    mk = p1_setup(A)
    p0 = A.pos()
    A.ext(job("W", R[3], "w0", True)); A.ext(job("C", None, "c0", True))
    A.ext(job("C", None, "c1", True)); A.ext(job("W", R[4], "w1", True))
    if OPT["touch"]:
        D = OPT["D"]
        for back in [D - rel for rel in range(0, D + 1, 2)]:
            A(f"v_subrev_u32 v{V_T}, {back*128}, v{V_TA}")
            A(f"v_subrev_u32 v{V_T+1}, {back*64*8192:#x}, v{V_TB}")
            A(f"buffer_load_dword v{V_DUM}, v{V_T}, {sr(S_C,4)}, 0 offen ;#touch")
            A(f"buffer_load_dword v{V_DUM}, v{V_T+1}, {sr(S_W,4)}, 0 offen ;#touch")
    s_setup(A, mk)
    p1_setup2(A, mk)
    A(f"s_lshl_b32 s{S_T}, s2, 8")
    A(f"s_add_u32 s{S_T}, s{S_T}, {WS_FLAG}")
    A(f"v_mov_b32 v{V_T}, 0")
    A(f"v_lshrrev_b32 v{V_T+1}, 2, v{V_L16}")
    A(f"buffer_store_dword v{V_T}, v{V_T+1}, {sr(S_WS,4)}, s{S_T} offen")
    for i in range(256): A(f"v_accvgpr_write_b32 a{i}, 0")
    stamp(A, 1)
    A("@WV c0")
    A("s_barrier")
    St.bbase = R[3]
    A.ext(rd_b(0, R[3])); A.ext(rd_a(0))
    A("@WV w1")
    resolve_vm(A, p0, A.pos(), False)
    A("s_waitcnt lgkmcnt(0)")
    stamp(A, 2)
    A(f"s_cmp_lt_u32 s{S_NSEL}, 2")
    A("s_cbranch_scc0 K1_V")
    p1_main(A, False)
    A("s_branch K1_FIN")
    A.lab("K1_V")
    p1_main(A, True)
    A.lab("K1_FIN")
    A("s_nop 7")
    s_attn(A)
    if OPT["stamp"]: dump_stamps(A, 7)
    A.lab("K1_END")
    A("s_endpgm")
    return kernel_desc(name, 512, 256)


NA = 18
A_SRDK, A_SRDV, A_SRDW = 4, 8, 28
A_KOFF, A_VOFF, A_M0, A_REM, A_M1, A_M2, A_W, A_HEAD = 16, 17, 18, 19, 20, 21, 12, 13
A_CM = 22
A_T0, A_T1, A_T2, A_T3 = 32, 33, 34, 35
A_BLK, A_TS, A_N, A_MODE, A_QOFF, A_PAIR, A_THR, A_SEG2 = 36, 37, 38, 39, 40, 41, 42, 43
X_L16, X_VA, X_D0, X_L, X_MX, X_THR, X_NINF, X_F, X_T = 1, 2, 3, 6, 8, 10, 11, 12, 16
X_NEGM, X_S, X_O, X_E = 24, 32, 96, 224
AQ, ARING, RING, LG = 0, 64, 32, 26
NE2 = OPT.get("ne2", 8)

def sreg(par, qb, kb, r=0): return X_S + par*32 + qb*16 + kb*4 + r
def oreg(qb, db): return X_O + qb*64 + db*4
def ringr(u): return ar(ARING + (u % RING)*4, 4)
def a_read(kind, slot, u):
    return f"ds_read_b128 {ringr(u)}, v{X_L16 if kind == 'K' else X_VA} offset:{slot*32768 + u*1024}"

def a_dma(kind, slot, tag, nop=False):
    sd, so = (A_SRDK, A_KOFF) if kind == "K" else (A_SRDV, A_VOFF)
    base = slot*32768 + (0 if kind == "K" else 65536)
    it = []
    for jj in range(8):
        if jj % 4 == 0:
            it.append(f"s_add_u32 m0, s{A_M0}, {base + (jj>>2)*4096}")
            if nop: it.append("s_nop 0")
        it.append(f"buffer_load_dwordx4 v{X_D0 + (jj>>2)}, {sr(sd,4)}, s{so} offen offset:{(jj&3)*1024} lds ;#{tag}")
    it.append(f"s_add_u32 s{so}, s{so}, 32768")
    return it

def a_qk(par):
    o = []
    for kb in range(4):
        for hf in range(2):
            for qb in range(2):
                for s in range(4*hf, 4*hf+4):
                    d = vr(sreg(par, qb, kb), 4)
                    c = vr(X_NEGM + qb*4, 4) if s == 0 else d
                    o.append(f"{MF} {d}, {ringr(kb*8+s)}, {ar(AQ+(qb*8+s)*4,4)}, {c}")
    return o

def a_pv(par):
    o = []
    for db in range(16):
        for qb in range(2):
            for ks in range(2):
                d = vr(oreg(qb, db), 4)
                o.append(f"{MF} {d}, {ringr(2*db+ks)}, {vr(sreg(par,qb,2*ks),4)}, {d}")
    return o

def a_exp_pairs(par):
    o = []
    for ks in range(2):
        for i in range(4):
            for qb in range(2):
                b = sreg(par, qb, 2*ks)
                x, y = b + 2*i, b + 2*i + 1
                o.append([f"v_exp_f32 v{x}, v{x}", f"v_exp_f32 v{y}, v{y}", f"v_add_f32 v{X_L+qb}, v{X_L+qb}, v{x}",
                          f"v_cvt_pk_bf16_f32 v{X_T+6}, v{x}, v{y}" if False else None,
                          f"v_add_f32 v{X_L+qb}, v{X_L+qb}, v{y}", f"v_cvt_pk_bf16_f32 v{b+i}, v{x}, v{y}"])
                o[-1] = [z for z in o[-1] if z]
    return o

def flat_pairs(prs):
    out = []
    pend = []
    for p in prs:
        out.append(p[0])
        if pend: out.append(pend.pop(0))
        out.append(p[1])
        out += pend
        pend = p[2:]
    out += pend
    return out

def a_max_items(par):
    o = []
    for kb in range(4):
        for qb in range(2):
            b = sreg(par, qb, kb)
            t = X_MX + qb
            if kb == 0:
                o.append((kb, f"v_max3_f32 v{t}, v{b}, v{b+1}, v{b+2}"))
            else:
                o.append((kb, f"v_max3_f32 v{t}, v{t}, v{b-1}, v{b}"))
        if kb:
            for qb in range(2):
                b = sreg(par, qb, kb); t = X_MX + qb
                o.append((kb, f"v_max3_f32 v{t}, v{t}, v{b+1}, v{b+2}"))
    return o
def a_max_fin(par):
    return [f"v_max3_f32 v{X_T}, v{X_MX}, v{sreg(par,0,3,3)}, v{sreg(par,1,3,3)}", f"v_max_f32 v{X_T}, v{X_T}, v{X_MX+1}"]

def a_mask(A, par, td):
    A(f"v_subrev_u32 v{X_T+1}, {64*td}, v{X_THR}")
    el = [(qb, kb, r) for qb in range(2) for kb in range(4) for r in range(4)]
    for i in range(32 + 3):
        if i >= 3:
            x = sreg(par, *el[i-3])
            A(f"v_cndmask_b32 v{x}, v{x}, v{X_NINF}, {sr(A_CM + 2*((i-3)%3), 2)}")
        if i < 32:
            qb, kb, r = el[i]
            A(f"v_cmp_gt_i32 {sr(A_CM + 2*(i%3), 2)}, {16*kb + r - 16*qb}, v{X_T+1}")
        else:
            A("s_nop 0")

def a_cross(A, reg, op):
    t = X_T + 1
    for sw in ("v_permlane16_swap_b32", "v_permlane32_swap_b32"):
        A(f"v_mov_b32 v{t}, v{reg}")
        A("s_nop 1")
        A(f"{sw} v{t}, v{reg}")
        A("s_nop 1")
        A(f"{op} v{reg}, v{reg}, v{t}")

def a_truemax(A, par):
    for _, s in a_max_items(par): A(s)
    for qb in range(2):
        A(f"v_max_f32 v{X_MX+qb}, v{X_MX+qb}, v{sreg(par,qb,3,3)}")
        a_cross(A, X_MX + qb, "v_max_f32")

def a_shift(A, par):
    for qb in range(2):
        for r in range(16): A(f"v_sub_f32 v{sreg(par,qb,0,r)}, v{sreg(par,qb,0,r)}, v{X_MX+qb}")
        for r in range(4): A(f"v_sub_f32 v{X_NEGM+qb*4+r}, v{X_NEGM+qb*4+r}, v{X_MX+qb}")

def reads_sched(S, g0, cur, nxt, wtag):
    NPRE = LG // 2
    BG = 62 - LG + 9
    S.stream_t([(g0 + 2*u - LG, g0 + 2*u - LG + 4, a_read(cur[0], cur[1], u)) for u in range(NPRE, 32)])
    for k in range(1, 3):
        S.at(g0 + 16*k - 1, "@WL " + " ".join(ringr(u) for u in range(8*k, 8*k+8)))
    if nxt is not None:
        S.at(g0 + BG, f"@WV {wtag} +L", "s_barrier")
        S.stream_t([(max(g0 + BG + 1 + u, g0 + 64 + 2*u - LG), g0 + 63, a_read(nxt[0], nxt[1], u)) for u in range(NPRE)])
        S.at(g0 + 63, "@WL " + " ".join(ringr(u) for u in range(8)))
    else:
        S.at(g0 + 47, "s_waitcnt lgkmcnt(0)")
    return BG

def a_body(A, par, outl, tail):
    S = Sched(a_qk(par ^ 1) + a_pv(par))
    BG = reads_sched(S, 0, ("K", par ^ 1), ("V", par), f"v{par}")
    reads_sched(S, 64, ("V", par), ("K", par), f"k{par}")
    S.stream(a_dma("V", par ^ 1, f"v{par^1}"), 0, BG - 2, deadline=BG - 1, solo=True)
    S.stream(a_dma("K", par ^ 1, f"k{par^1}"), 64, 64 + BG - 2, deadline=64 + BG - 1, solo=True)
    S.stream(flat_pairs(a_exp_pairs(par)[NE2:]), 0, 58, deadline=61)
    mx = [(16*kb + 18, 70, s) for i, (kb, s) in enumerate(a_max_items(par ^ 1))]
    mx += [(68 + i, 71, s) for i, s in enumerate(a_max_fin(par ^ 1))] + [(70, 71, f"v_cmp_lt_f32 vcc, s{A_THR}, v{X_T}")]
    S.stream_t(mx)
    LM, LMR, LR, LRR, LO, LOR = [A.new(x) for x in ("MASK", "MASKR", "RESC", "RESCR", "RESO", "RESOR")]
    S.at(72, f"s_cmp_eq_u32 s{A_REM}, s{A_M1 if par == 0 else A_M2}", f"s_cbranch_scc1 {LM}", LMR + ":")
    S.at(73, f"s_cbranch_vccnz {LR}", LRR + ":")
    S.stream(flat_pairs(a_exp_pairs(par ^ 1)[:NE2]), 74, 124, deadline=127)
    for g, ins in tail.items(): S.at(g, *ins)
    S.emit(A, f"attn{par}")
    A(f"s_cbranch_vccnz {LO}")
    A.lab(LOR)
    def ool():
        A.lab(LM)
        a_mask(A, par ^ 1, 1 if par == 0 else 0)
        A(f"s_branch {LMR}")
        A.lab(LR)
        a_truemax(A, par ^ 1)
        for qb in range(2):
            A(f"v_max_f32 v{X_MX+qb}, 0, v{X_MX+qb}")
            A(f"v_exp_f32 v{X_F+2*qb}, -v{X_MX+qb}")
        a_shift(A, par ^ 1)
        for qb in range(2): A(f"v_mul_f32 v{X_L+qb}, v{X_L+qb}, v{X_F+2*qb}")
        A(f"s_branch {LRR}")
        A.lab(LO)
        A("s_nop 7")
        for qb in range(2):
            for r in range(64): A(f"v_mul_f32 v{X_O+qb*64+r}, v{X_O+qb*64+r}, v{X_F+2*qb}")
        A(f"s_branch {LOR}")
    outl.append(ool)

def a_last(A, par):
    A("s_waitcnt vmcnt(0) lgkmcnt(0)")
    A("s_barrier")
    for u in range(LG // 2): A(a_read("V", par, u))
    A.ext(flat_pairs(a_exp_pairs(par)[NE2:]))
    A("s_nop 0")
    A("@WL " + " ".join(ringr(u) for u in range(8)))
    S = Sched(a_pv(par))
    reads_sched(S, 0, ("V", par), None, None)
    S.emit(A, "last")

def a_store_o(A, sc):
    A(f"s_add_u32 s{A_T0}, s{A_QOFF}, {WS_CTX - WS_Q}")
    for g in range(16):
        t = X_E + (g % 4)*4
        b = X_O + g*8
        f = X_F + 2*(g >> 3)
        for i in range(4):
            A(f"v_pk_mul_f32 {vr(b+2*i,2)}, {vr(b+2*i,2)}, {vr(f,2)} op_sel_hi:[1,0]")
        for i in range(4):
            A(f"v_cvt_pk_bf16_f32 v{t+i}, v{b+2*i}, v{b+2*i+1}")
        if g % 4 == 0 and g: A(f"s_add_u32 s{A_T0}, s{A_T0}, 4096")
        A(f"buffer_store_dwordx4 {vr(t,4)}, v{X_L16}, {sr(A_SRDW,4)}, s{A_T0} offen offset:{(g%4)*1024}{sc}")

def gen_k2(A):
    name = "attn_kernel"
    kernel_head(A, name)
    A("s_cmp_ge_u32 s2, 256")
    A("s_cbranch_scc1 K2_END")
    stamp(A, 0)
    A(f"s_load_dwordx2 {sr(A_SRDW,2)}, s[0:1], {KA['ws']}")
    A(f"v_lshrrev_b32 v{X_T}, 6, v0")
    A(f"v_and_b32 v{X_L16}, 63, v0")
    A(f"v_readfirstlane_b32 s{A_W}, v{X_T}")
    A(f"v_lshlrev_b32 v{X_L16}, 4, v{X_L16}")
    A(f"v_add_u32 v{X_VA}, 0x10000, v{X_L16}")
    A(f"v_lshl_add_u32 v{X_D0}, v{X_T}, 13, v{X_L16}")
    A(f"v_add_u32 v{X_D0+1}, 4096, v{X_D0}")
    A(f"v_and_b32 v{X_THR}, 15, v0")
    A(f"v_lshl_add_u32 v{X_THR}, v{X_T}, 5, v{X_THR}")
    A(f"v_bfe_u32 v{X_T+1}, v0, 4, 2")
    A(f"v_lshlrev_b32 v{X_T+1}, 2, v{X_T+1}")
    A(f"v_sub_u32 v{X_THR}, v{X_THR}, v{X_T+1}")
    A(f"v_mov_b32 v{X_NINF}, 0xff800000")
    A(f"s_mov_b32 s{A_THR}, {OPT.get('thr', 0x41c00000)}")
    A(f"s_lshl_b32 s{A_M0}, s{A_W}, 13")
    A(f"s_and_b32 s{A_HEAD}, s2, 7")
    A(f"s_lshl_b32 s{A_HEAD}, s{A_HEAD}, 1")
    A(f"s_bfe_u32 s{A_T0}, s2, 0x10003")
    A(f"s_add_u32 s{A_HEAD}, s{A_HEAD}, s{A_T0}")
    A(f"s_bfe_u32 s{A_PAIR}, s2, 0x30004")
    A(f"s_sub_u32 s{A_BLK}, 15, s{A_PAIR}")
    A(f"s_lshl_b32 s{A_T1}, s{A_BLK}, 1")
    A(f"s_sub_u32 s{A_T1}, s{A_T1}, {NA-2}")
    A("s_waitcnt lgkmcnt(0)")
    A(f"s_lshl_b32 s{A_T0}, s{A_HEAD}, 20")
    A(f"s_add_u32 s{A_T2}, s{A_SRDW}, s{A_T0}")
    A(f"s_addc_u32 s{A_T3}, s{A_SRDW+1}, 0")
    srd(A, A_SRDK, A_T2, A_T3, MB)
    A(f"s_add_u32 s{A_T2}, s{A_T2}, {WS_V}")
    A(f"s_addc_u32 s{A_T3}, s{A_T3}, 0")
    srd(A, A_SRDV, A_T2, A_T3, MB)
    srd(A, A_SRDW, A_SRDW, A_SRDW+1, 128*MB)
    A(f"s_bitcmp1_b32 s2, 7")
    A(f"s_cbranch_scc1 K2_ROLEB")
    A(f"s_mov_b32 s{A_TS}, s{A_T1}")
    A(f"s_mov_b32 s{A_N}, {NA}")
    A(f"s_mov_b32 s{A_M1}, 1")
    A(f"s_mov_b32 s{A_M2}, 2")
    A(f"s_min_u32 s{A_MODE}, s{A_T1}, 1")
    A(f"s_mov_b32 s{A_SEG2}, 0")
    A(f"s_branch K2_SEG")
    A.lab("K2_ROLEB")
    A(f"s_mov_b32 s{A_TS}, 0")
    A(f"s_mov_b32 s{A_N}, s{A_T1}")
    A(f"s_mov_b32 s{A_M1}, -1")
    A(f"s_mov_b32 s{A_M2}, -1")
    A(f"s_mov_b32 s{A_MODE}, 1")
    A(f"s_mov_b32 s{A_SEG2}, 1")
    A(f"s_cmp_lg_u32 s{A_N}, 0")
    A(f"s_cbranch_scc1 K2_SEG")
    A.lab("K2_SEG2")
    A(f"s_mov_b32 s{A_BLK}, s{A_PAIR}")
    A(f"s_mov_b32 s{A_TS}, 0")
    A(f"s_lshl_b32 s{A_N}, s{A_PAIR}, 1")
    A(f"s_add_u32 s{A_N}, s{A_N}, 2")
    A(f"s_mov_b32 s{A_M1}, 1")
    A(f"s_mov_b32 s{A_M2}, 2")
    A(f"s_mov_b32 s{A_MODE}, 0")
    A(f"s_mov_b32 s{A_SEG2}, 0")
    A.lab("K2_SEG")
    p0 = A.pos()
    A("s_barrier")
    A(f"s_lshl_b32 s{A_KOFF}, s{A_TS}, 15")
    A(f"s_mov_b32 s{A_VOFF}, s{A_KOFF}")
    A(f"s_add_u32 s{A_T0}, s{A_TS}, s{A_N}")
    A(f"s_lshl_b32 s{A_SRDK+2}, s{A_T0}, 15")
    A(f"s_mov_b32 s{A_SRDV+2}, s{A_SRDK+2}")
    A(f"s_lshl_b32 s{A_QOFF}, s{A_HEAD}, 20")
    A(f"s_lshl_b32 s{A_T0}, s{A_BLK}, 2")
    A(f"s_add_u32 s{A_T0}, s{A_T0}, s{A_W}")
    A(f"s_lshl_b32 s{A_T0}, s{A_T0}, 14")
    A(f"s_add_u32 s{A_QOFF}, s{A_QOFF}, s{A_T0}")
    A(f"s_add_u32 s{A_QOFF}, s{A_QOFF}, {WS_Q}")
    A.ext(a_dma("K", 0, "k0", True))
    A(f"s_mov_b32 s{A_T0}, s{A_QOFF}")
    for s in range(16):
        if s % 4 == 0 and s: A(f"s_add_u32 s{A_T0}, s{A_T0}, 4096")
        A(f"buffer_load_dwordx4 {ar(AQ+s*4,4)}, v{X_L16}, {sr(A_SRDW,4)}, s{A_T0} offen offset:{(s%4)*1024} ;#q")
    A.ext(a_dma("K", 1, "k1", True))
    A.ext(a_dma("V", 0, "v0", True))
    for r in range(128): A(f"v_mov_b32 v{X_O+r}, 0")
    for r in range(8): A(f"v_mov_b32 v{X_NEGM+r}, 0")
    A(f"v_mov_b32 v{X_L}, 0")
    A(f"v_mov_b32 v{X_L+1}, 0")
    A(f"s_sub_u32 s{A_REM}, s{A_N}, 1")
    stamp(A, 1)
    A("@WV q")
    A("s_barrier")
    for u in range(LG // 2): A(a_read("K", 0, u))
    A("@WL " + " ".join(ringr(u) for u in range(8)))
    S = Sched(a_qk(0))
    reads_sched(S, 0, ("K", 0), ("K", 1), "k1")
    S.emit(A, "qk0")
    A.ext(a_dma("K", 0, "k0", True))
    A(f"s_cmp_eq_u32 s{A_N}, s{A_M2}")
    A("s_cbranch_scc0 K2_NOM0")
    a_mask(A, 0, 0)
    A.lab("K2_NOM0")
    a_truemax(A, 0)
    a_shift(A, 0)
    A.ext(flat_pairs(a_exp_pairs(0)[:NE2]))
    A.resolve_waits(p0, A.pos(), False); resolve_vm(A, p0, A.pos(), False)
    stamp(A, 2)
    if OPT["stamp"]: A("s_waitcnt lgkmcnt(0)")
    outl = []
    A(".p2align 6")
    A.lab("K2_LOOP")
    l0 = A.pos()
    a_body(A, 0, outl, {123: [f"s_sub_u32 s{A_REM}, s{A_REM}, 1"], 125: [f"s_cmp_eq_u32 s{A_REM}, 0"]})
    A("s_cbranch_scc1 K2_LAST")
    a_body(A, 1, outl, {123: [f"s_sub_u32 s{A_REM}, s{A_REM}, 1"]})
    A("s_branch K2_LOOP")
    A.resolve_waits(l0, A.pos(), True); resolve_vm(A, l0, A.pos(), True)
    for f in outl: f()
    A.lab("K2_LAST")
    stamp(A, 3)
    l1 = A.pos()
    a_last(A, 1)
    A.resolve_waits(l1, A.pos(), False)
    stamp(A, 4)
    for qb in range(2): a_cross(A, X_L + qb, "v_add_f32")
    A(f"s_cmp_eq_u32 s{A_MODE}, 0")
    A("s_cbranch_scc1 K2_FINAL")
    A(f"s_lshl_b32 s{A_T1}, s{A_HEAD}, 3")
    A(f"s_add_u32 s{A_T1}, s{A_T1}, s{A_PAIR}")
    A(f"s_lshl_b32 s{A_T1}, s{A_T1}, 2")
    A(f"s_add_u32 s{A_T1}, s{A_T1}, s{A_W}")
    A(f"s_lshl_b32 s{A_T2}, s{A_T1}, 10")
    A(f"s_add_u32 s{A_T2}, s{A_T2}, {WS_PART}")
    A(f"s_lshl_b32 s{A_T1}, s{A_T1}, 7")
    A(f"s_add_u32 s{A_T1}, s{A_T1}, {WS_FLAG}")
    A(f"v_mov_b32 v{X_T}, 1")
    A(f"v_mov_b32 v{X_T+1}, 0")
    A("s_mov_b64 exec, 1")
    A(f"buffer_atomic_add v{X_T}, v{X_T+1}, {sr(A_SRDW,4)}, s{A_T1} offen sc0 sc1")
    A("s_waitcnt vmcnt(0)")
    A(f"v_readfirstlane_b32 s{A_T3}, v{X_T}")
    A("s_mov_b64 exec, -1")
    A(f"s_cmp_eq_u32 s{A_T3}, 0")
    A("s_cbranch_scc0 K2_COMBINE")
    for qb in range(2): A(f"v_rcp_f32 v{X_F+2*qb}, v{X_L+qb}")
    A(f"v_mov_b32 v{X_T+4}, v{X_NEGM}")
    A(f"v_mov_b32 v{X_T+5}, v{X_NEGM+4}")
    A(f"v_mov_b32 v{X_T+6}, v{X_L}")
    A(f"v_mov_b32 v{X_T+7}, v{X_L+1}")
    A(f"buffer_store_dwordx4 {vr(X_T+4,4)}, v{X_L16}, {sr(A_SRDW,4)}, s{A_T2} offen sc1")
    a_store_o(A, " sc1")
    A("s_waitcnt vmcnt(0)")
    A(f"v_mov_b32 v{X_T}, 2")
    A("s_mov_b64 exec, 1")
    A(f"buffer_atomic_add v{X_T}, v{X_T+1}, {sr(A_SRDW,4)}, s{A_T1} offen sc1")
    A("s_mov_b64 exec, -1")
    A("s_branch K2_NEXT")
    A.lab("K2_COMBINE")
    A(f"s_cmp_eq_u32 s{A_T3}, 3")
    A("s_cbranch_scc1 K2_READY")
    A.lab("K2_SPIN")
    A("s_sleep 2")
    A(f"v_mov_b32 v{X_T}, 0")
    A("s_mov_b64 exec, 1")
    A(f"buffer_atomic_add v{X_T}, v{X_T+1}, {sr(A_SRDW,4)}, s{A_T1} offen sc0 sc1")
    A("s_waitcnt vmcnt(0)")
    A(f"v_readfirstlane_b32 s{A_T3}, v{X_T}")
    A("s_mov_b64 exec, -1")
    A(f"s_cmp_eq_u32 s{A_T3}, 4")
    A("s_cbranch_scc0 K2_SPIN")
    A.lab("K2_READY")
    A(f"buffer_load_dwordx4 {vr(X_T+4,4)}, v{X_L16}, {sr(A_SRDW,4)}, s{A_T2} offen sc1")
    A(f"s_add_u32 s{A_T0}, s{A_QOFF}, {WS_CTX - WS_Q}")
    for g in range(16):
        if g % 4 == 0 and g: A(f"s_add_u32 s{A_T0}, s{A_T0}, 4096")
        A(f"buffer_load_dwordx4 {vr(X_S+g*4,4)}, v{X_L16}, {sr(A_SRDW,4)}, s{A_T0} offen offset:{(g%4)*1024} sc1")
    A("s_waitcnt vmcnt(16)")
    for qb in range(2):
        n1, n2, l2 = X_NEGM + 4*qb, X_T + 4 + qb, X_T + 6 + qb
        w1, w2 = X_F + 2*qb, X_F + 2*qb + 1
        A(f"v_min_f32 v{X_T}, v{n1}, v{n2}")
        A(f"v_sub_f32 v{w1}, v{X_T}, v{n1}")
        A(f"v_sub_f32 v{w2}, v{X_T}, v{n2}")
        A(f"v_exp_f32 v{w1}, v{w1}")
        A(f"v_exp_f32 v{w2}, v{w2}")
        A("s_nop 0")
        A(f"v_mul_f32 v{w2}, v{w2}, v{l2}")
        A(f"v_fma_f32 v{X_L+qb}, v{X_L+qb}, v{w1}, v{w2}")
    for g in range(16):
        A(f"s_waitcnt vmcnt({15-g})")
        w1, w2 = X_F + 2*(g >> 3), X_F + 2*(g >> 3) + 1
        for i in range(4):
            p = X_S + g*4 + i
            o = X_O + g*8 + 2*i
            A(f"v_lshlrev_b32 v{X_T}, 16, v{p}")
            A(f"v_and_b32 v{X_T+1}, 0xffff0000, v{p}")
            A(f"v_mul_f32 v{X_T}, v{X_T}, v{w2}")
            A(f"v_mul_f32 v{X_T+1}, v{X_T+1}, v{w2}")
            A(f"v_fma_f32 v{o}, v{o}, v{w1}, v{X_T}")
            A(f"v_fma_f32 v{o+1}, v{o+1}, v{w1}, v{X_T+1}")
    A.lab("K2_FINAL")
    for qb in range(2): A(f"v_rcp_f32 v{X_F+2*qb}, v{X_L+qb}")
    A("s_nop 0")
    a_store_o(A, "")
    A.lab("K2_NEXT")
    A(f"s_cmp_eq_u32 s{A_SEG2}, 1")
    A("s_cbranch_scc1 K2_SEG2")
    if OPT["stamp"]: dump_stamps(A, 5)
    A.lab("K2_END")
    A("s_endpgm")
    return kernel_desc(name, 448, 256)


def gen_k3(A):
    name = "outp_kernel"
    kernel_head(A, name)
    A("s_cmp_ge_u32 s2, 224")
    A("s_cbranch_scc1 K3_END")
    stamp(A, 0)
    SW, SWA, SO, SWS = 4, 8, 12, 28
    W, RB, NT, CO, WO, M0B, T0, T1 = 16, 17, 18, 19, 20, 21, 22, 23
    A(f"s_load_dwordx2 s[34:35], s[0:1], {KA['A_wo']}")
    A(f"s_load_dwordx4 s[36:39], s[0:1], {KA['B_wo']}")
    A(f"s_load_dwordx2 {sr(SWS,2)}, s[0:1], {KA['ws']}")
    VL, VC, VCA, VW, VR, VT = 1, 2, 6, 10, 14, 18
    DEPTH = 7
    NR = 8
    CX = 32
    WF = 160
    A(f"v_lshrrev_b32 v{VT}, 6, v0")
    A(f"v_and_b32 v{VL}, 63, v0")
    A(f"v_readfirstlane_b32 s{W}, v{VT}")
    A(f"v_lshlrev_b32 v{VL}, 4, v{VL}")
    for q in range(4):
        A(f"v_add_u32 v{VC+q}, {q*8192}, v{VL}")
        A(f"v_add_u32 v{VCA+q}, {q*16384}, v{VL}")
    A(f"v_bfe_u32 v{VT+1}, v0, 3, 3")
    A(f"v_and_b32 v{VT+2}, 6, v{VT+1}")
    A(f"v_and_b32 v{VT+3}, 7, v0")
    A(f"v_xor_b32 v{VT+2}, v{VT+2}, v{VT+3}")
    A(f"v_mul_u32_u24 v{VT+1}, 896, v{VT+1}")
    A(f"v_lshl_add_u32 v{VW}, v{VT+2}, 4, v{VT+1}")
    for jj in range(1, 4): A(f"v_add_u32 v{VW+jj}, {jj*(7168-1024)}, v{VW}")
    A(f"v_bfe_u32 v{VT+1}, v0, 2, 4")
    A(f"v_bfe_u32 v{VT+2}, v0, 3, 2")
    A(f"v_lshlrev_b32 v{VT+1}, 7, v{VT+1}")
    A(f"v_lshl_add_u32 v{VT+1}, v{VT}, 15, v{VT+1}")
    A(f"v_and_b32 v{VT+3}, 3, v0")
    A(f"v_lshl_add_u32 v{VT+1}, v{VT+3}, 3, v{VT+1}")
    for mb in range(4):
        A(f"v_xor_b32 v{VT+3}, {mb}, v{VT+2}")
        A(f"v_lshl_add_u32 v{VR+mb}, v{VT+3}, 5, v{VT+1}")
    A(f"s_and_b32 s{RB}, s2, 7")
    A(f"s_lshl_b32 s{RB}, s{RB}, 2")
    A(f"s_bfe_u32 s{T0}, s2, 0x20003")
    A(f"s_add_u32 s{RB}, s{RB}, s{T0}")
    A(f"s_lshr_b32 s{NT}, s2, 5")
    A(f"s_lshl_b32 s{M0B}, s{W}, 15")
    A(f"s_lshl_b32 s{CO}, s{W}, 22")
    A(f"s_lshl_b32 s{T0}, s{RB}, 15")
    A(f"s_add_u32 s{CO}, s{CO}, s{T0}")
    A(f"s_add_u32 s{CO}, s{CO}, {WS_CTX}")
    A(f"s_mul_i32 s{WO}, s{W}, {1024*896}")
    A(f"s_lshl_b32 s{T0}, s{NT}, 7")
    A(f"s_add_u32 s{WO}, s{WO}, s{T0}")
    A("s_waitcnt lgkmcnt(0)")
    srd(A, SW, 36, 37, 4096*896)
    srd(A, SWA, 34, 35, 448*896)
    srd(A, SO, 38, 39, 2048*1792)
    srd(A, SWS, SWS, SWS+1, 128*MB)
    NS = 36
    def loads(st):
        o = []
        slot = st % NR
        if st == 32:
            o.append([f"s_lshl_b32 s{CO}, s{RB}, 16", f"s_lshl_b32 s{T0}, s{W}, 12", f"s_add_u32 s{CO}, s{CO}, s{T0}", f"s_add_u32 s{CO}, s{CO}, {WS_OA}",
                      f"s_mul_i32 s{WO}, s{W}, {112*896}", f"s_lshl_b32 s{T0}, s{NT}, 7", f"s_add_u32 s{WO}, s{WO}, s{T0}"])
        o.append(f"s_add_u32 m0, s{M0B}, {slot*4096}")
        for q in range(4):
            o.append(f"buffer_load_dwordx4 {vr(CX+slot*16+q*4,4)}, v{(VC if st < 32 else VCA)+q}, {sr(SWS,4)}, s{CO} offen ;#l{st}")
        for jj in range(4):
            o.append(f"buffer_load_dwordx4 v{VW+jj}, {sr(SW if st < 32 else SWA,4)}, s{WO} offen offset:{jj*1024} lds ;#l{st}")
        if st < 32:
            o.append([f"s_add_u32 s{CO}, s{CO}, {1024 if st % 8 != 7 else MB - 7*1024}", f"s_add_u32 s{WO}, s{WO}, {32*896}"])
        else:
            o.append([f"s_add_u32 s{CO}, s{CO}, 1024", f"s_add_u32 s{WO}, s{WO}, {28*896}"])
        return o
    def trs(st):
        return [f"ds_read_b64_tr_b16 {vr(WF+(st&1)*16+mb*4+2*q,2)}, v{VR+mb} offset:{(st%NR)*4096+q*2048}" for mb in range(4) for q in range(2)]
    p0 = A.pos()
    for st in range(DEPTH): A.ext(loads(st))
    stamp(A, 1)
    A("@WV l0")
    A.ext(trs(0))
    A("s_waitcnt lgkmcnt(0)")
    stamp(A, 2)
    for st in range(NS):
        mf = []
        for mb in range(4):
            for q in range(4):
                c = ar((64 if st >= 32 else 0) + (q*4+mb)*4, 4)
                mf.append(f"{MF} {c}, {vr(WF+(st&1)*16+mb*4,4)}, {vr(CX+(st%NR)*16+q*4,4)}, {'0' if st in (0, 32) else c}")
        S = Sched(mf)
        if st + 1 < NS:
            S.at(0, f"@WV l{st+1}")
            S.stream(trs(st+1), 1, 8, deadline=10)
            S.at(15, "s_waitcnt lgkmcnt(0)")
        if st + DEPTH < NS:
            its = loads(st + DEPTH)
            S.stream_t([(1 + i, 15 - len(its) + i + 1, x) for i, x in enumerate(its)])
            S.solo.add(id(S.streams[-1]))
        S.emit(A, "")
    resolve_vm(A, p0, A.pos(), False)
    stamp(A, 3)
    A("s_nop 7")
    A(f"v_lshl_add_u32 v{VT+1}, v{VT}, 15, v{VL}")
    for i in range(32):
        A(f"ds_write_b128 v{VT+1}, {ar(i*4,4)} offset:{i*1024}")
    A("s_waitcnt lgkmcnt(0)")
    A("s_barrier")
    A(f"v_lshl_add_u32 v{VT+1}, v{VT}, 12, v{VL}")
    A(f"v_add_u32 v{VT+2}, 0x10000, v{VT+1}")
    A(f"v_and_b32 v{VT+3}, 15, v0")
    A(f"v_lshl_add_u32 v{VT+3}, v{VT}, 4, v{VT+3}")
    A(f"v_mul_u32_u24 v{VT+3}, 1792, v{VT+3}")
    A(f"v_bfe_u32 v{VT+4}, v0, 4, 2")
    A(f"v_lshl_add_u32 v{VT+3}, v{VT+4}, 3, v{VT+3}")
    A(f"s_mul_i32 s{T0}, s{RB}, {64*1792}")
    A(f"s_lshl_b32 s{T1}, s{NT}, 7")
    A(f"s_add_u32 s{T0}, s{T0}, s{T1}")
    for part in range(2):
        for mb in range(4):
            for w in range(4):
                A(f"ds_read_b128 {vr(CX+part*64+(mb*4+w)*4,4)}, v{VT+1+(w>>1)} offset:{(w&1)*32768 + part*16384 + mb*1024}")
        A("s_waitcnt lgkmcnt(0)")
        for mb in range(4):
            b = CX + part*64 + mb*16
            for r in range(4):
                A(f"v_add_f32 v{b+r}, v{b+r}, v{b+4+r}")
                A(f"v_add_f32 v{b+8+r}, v{b+8+r}, v{b+12+r}")
            for r in range(4): A(f"v_add_f32 v{b+r}, v{b+r}, v{b+8+r}")
            A(f"v_cvt_pk_bf16_f32 v{b}, v{b}, v{b+1}")
            A(f"v_cvt_pk_bf16_f32 v{b+1}, v{b+2}, v{b+3}")
            A(f"buffer_store_dwordx2 {vr(b,2)}, v{VT+3}, {sr(SO,4)}, s{T0} offen offset:{mb*32 + (896 if part == 0 else 0)}")
    if OPT["stamp"]: dump_stamps(A, 4)
    A.lab("K3_END")
    A("s_endpgm")
    return kernel_desc(name, 192 + 128, 192)


def main():
    A = Asm()
    hdr = ["; generated by gen2.py",
           "; @launch kernel=proj_kernel grid=(256,1,1) block=(256,1,1) lds=163840",
           "; @launch kernel=attn_kernel grid=(256,1,1) block=(256,1,1) lds=131072",
           "; @launch kernel=outp_kernel grid=(224,1,1) block=(256,1,1) lds=131072"]
    A('.amdgcn_target "amdgcn-amd-amdhsa--gfx950"')
    A(".text")
    descs = [gen_k1(A), gen_k2(A), gen_k3(A)]
    A('.section .rodata,"a"')
    out = "\n".join(hdr) + "\n" + A.text()
    for d in descs: out += ".p2align 6\n" + d
    open(sys.argv[1], "w").write(out)
main()
```
